```python
import torch

def _softmax(x, axis=-1):
    return torch.softmax(x, dim=axis)
def _gelu(x):
    return torch.nn.functional.gelu(x, approximate="tanh")
def _silu(x):
    return torch.nn.functional.silu(x)
def _sigmoid(x):
    return torch.sigmoid(x)
def _layernorm(x, axis=-1, eps=1e-5):
    m = x.mean(dim=axis, keepdim=True)
    v = x.var(dim=axis, keepdim=True, unbiased=False)
    return (x - m) / torch.sqrt(v + eps)
def _scatter_add(tgt, idx, src, axis=0):
    return tgt.clone().index_add_(axis, idx, src)
def _segment_sum(src, seg, n):
    out = torch.zeros((n,) + src.shape[1:], dtype=src.dtype)
    return out.index_add_(0, seg, src)
def _pad(x, pw):
    flat = tuple(v for pair in reversed(pw) for v in pair)
    return torch.nn.functional.pad(x, flat)

kernel_name = 'standalone__gqa_softmax__decode'

def setup_inputs():

    _w = (lambda a: (lambda t: t.to(torch.bfloat16) if t.is_floating_point() else t)(torch.as_tensor(a)))
    B, Hq, Hkv, Sq, Sk, D = 4, 16, 8, 1, 16384, 256
    return {
        "q": _w((lambda *s: torch.randn(*s, dtype=torch.bfloat16) * 0.8)(B, Hq, Sq, D)),
        "k": _w((lambda *s: torch.randn(*s, dtype=torch.bfloat16) * 0.8)(B, Hkv, Sk, D)),
        "v": _w((lambda *s: torch.randn(*s, dtype=torch.bfloat16) * 0.05)(B, Hkv, Sk, D)),
    }

def reference(q, k, v):
    B, Hq, Sq, D = q.shape
    Hkv = k.shape[1]
    rep = Hq // Hkv
    k = (lambda x, n, axis: torch.repeat_interleave(x, n, dim=axis))(k, rep, axis=1)
    v = (lambda x, n, axis: torch.repeat_interleave(x, n, dim=axis))(v, rep, axis=1)
    scale = D ** -0.5
    scores = torch.einsum("bhqd,bhkd->bhqk", q, k) * scale
    p = _softmax(scores, axis=-1)
    return torch.einsum("bhqk,bhkd->bhqd", p, v)
```

```python
import sys
KN = "standalone__gqa_softmax__decode_kernel"
def gen(mode='vgpr', NWG=256, WPW=4, U=8, R=4, mp='wgblocked', pol='', grpmode=0, ldspad=0, voff=0, only='', single=0, dsplit=0):
    nw = NWG * WPW
    TOT = 256 << 20
    SPAN = TOT // 2 if only else TOT
    REG = 2 if single else 1
    tile = U * 1024
    NT = SPAN // (nw * tile)
    NT -= NT % (R // 2)
    sys.stderr.write(f'NWG {NWG} bytes {2*NT*nw*tile}\n')
    assert (R) * U <= 63 + U
    L = []
    A = L.append
    lds = 0
    if mode == 'lds':
        lds = WPW * R * tile
        assert lds <= 160 * 1024
    lds = max(lds, ldspad)
    A(f"; @launch grid=({NWG},1,1) block=({WPW*64},1,1) lds={lds}")
    A('.amdgcn_target "amdgcn-amd-amdhsa--gfx950"')
    A(".text"); A(f".globl {KN}"); A(".p2align 8"); A(f".type {KN},@function"); A(f"{KN}:")
    A(f"  s_cmp_ge_u32 s2, {NWG}")
    A("  s_cbranch_scc1 L_end")
    A("  s_memrealtime s[24:25]")
    A("  s_load_dwordx4 s[4:7], s[0:1], 8")
    A("  s_load_dwordx2 s[20:21], s[0:1], 40")
    A("  v_lshrrev_b32 v1, 6, v0")
    A("  v_and_b32 v2, 63, v0")
    A("  v_readfirstlane_b32 s16, v1")
    if dsplit:
        A("  v_lshrrev_b32 v3, 4, v2"); A("  v_lshlrev_b32 v3, 9, v3"); A("  v_and_b32 v2, 15, v2"); A("  v_lshl_add_u32 v2, v2, 4, v3")
        A("  v_add_u32 v3, 4096, v2")
    else:
        A("  v_lshlrev_b32 v2, 4, v2")
    for g in range(1, (U + 3) // 4):
        A(f"  v_add_u32 v{2+g}, {g*4096}, v2")
    A("  s_waitcnt lgkmcnt(0)")
    A("  s_mov_b32 s8, s4"); A("  s_mov_b32 s9, s5"); A(f"  s_mov_b32 s10, {TOT}"); A("  s_mov_b32 s11, 0x20000")
    A("  s_mov_b32 s12, s6"); A("  s_mov_b32 s13, s7"); A(f"  s_mov_b32 s14, {TOT}"); A("  s_mov_b32 s15, 0x20000")
    A("  s_mov_b32 s22, 0x40000000"); A("  s_mov_b32 s23, 0x20000")
    if mp == 'blocked':
        A(f"  s_mul_i32 s17, s2, {WPW}"); A("  s_add_u32 s17, s17, s16"); A(f"  s_mul_i32 s17, s17, {TOT//nw}")
        S = tile
    elif mp == 'wgblocked':
        A(f"  s_mul_i32 s17, s2, {REG*((SPAN//NWG)//(WPW*tile)*(WPW*tile))}"); A(f"  s_mul_i32 s18, s16, {tile*(2 if dsplit else 1)}"); A("  s_add_u32 s17, s17, s18")
        S = WPW * tile
    elif mp == 'grp':
        NS = NWG // 32
        if grpmode == 0:
            import math
            sh = int(math.log2(NS))
            A(f"  s_lshr_b32 s18, s2, {sh}"); A(f"  s_and_b32 s19, s2, {NS-1}")
        else:
            A(f"  s_and_b32 s18, s2, 31"); A(f"  s_lshr_b32 s19, s2, 5")
        A(f"  s_mul_i32 s17, s18, {8<<20}")
        A(f"  s_mul_i32 s19, s19, {WPW}"); A("  s_add_u32 s19, s19, s16"); A(f"  s_mul_i32 s19, s19, {tile}")
        A("  s_add_u32 s17, s17, s19")
        S = NS * WPW * tile
    elif mp == 'all':
        A(f"  s_mul_i32 s17, s2, {WPW}"); A("  s_add_u32 s17, s17, s16"); A(f"  s_mul_i32 s17, s17, {tile}")
        S = nw * tile
    if mode == 'lds':
        A(f"  s_mul_i32 s19, s16, {R*tile}")
    VB = 8
    def issue(slot):
        srd = "s[8:11]" if slot % 2 == 0 else "s[12:15]"
        if only == 'k': srd = "s[8:11]"
        if only == 'v': srd = "s[12:15]"
        so = "s17"
        if only and slot % 2 == 1 and not single:
            A(f"  s_add_u32 s30, s17, {TOT//2}"); so = "s30"
        if only and slot % 2 == 1 and single and not dsplit:
            A(f"  s_add_u32 s17, s17, {S}")
        if slot % 2 == 1 and voff:
            A(f"  s_xor_b32 s30, s17, {voff}"); so = "s30"
        if dsplit:
            h = slot % 2
            for j in range(4):
                io = (j % 2) * 2048 + h * 256
                A(f"  s_add_u32 m0, s19, {slot*tile + j*1024 - io + 4096}")
                A("  s_nop 0")
                A(f"  buffer_load_dwordx4 v{2+j//2}, {srd}, s17 offen offset:{io} {pol} lds")
            if h == 1:
                A(f"  s_add_u32 s17, s17, {2*S}")
            return
        for j in range(U):
            if mode == 'vgpr':
                r = VB + (slot * U + j) * 4
                A(f"  buffer_load_dwordx4 v[{r}:{r+3}], v{2+j//4}, {srd}, {so} offen offset:{(j%4)*1024} {pol}")
            else:
                if j % 4 == 0:
                    A(f"  s_add_u32 m0, s19, {slot*tile + (j//4)*4096}")
                    A("  s_nop 0")
                A(f"  buffer_load_dwordx4 v{2+j//4}, {srd}, {so} offen offset:{(j%4)*1024} {pol} lds")
        if slot % 2 == 1:
            A(f"  s_add_u32 s17, s17, {S}")
    for s in range(R):
        issue(s)
    nit = NT // (R // 2) - 1
    A(f"  s_mov_b32 s18, {nit}")
    A("L_loop:")
    for s in range(R):
        A(f"  s_waitcnt vmcnt({(R-1)*U})")
        issue(s)
    A("  s_sub_u32 s18, s18, 1")
    A("  s_cmp_lg_u32 s18, 0")
    A("  s_cbranch_scc1 L_loop")
    A("  s_waitcnt vmcnt(0)")
    A("  s_barrier")
    A("  s_memrealtime s[26:27]")
    A("  s_waitcnt lgkmcnt(0)")
    A("  s_cmp_lg_u32 s16, 0")
    A("  s_cbranch_scc1 L_end")
    A("  s_getreg_b32 s28, hwreg(HW_REG_XCC_ID)"); A("  s_getreg_b32 s29, hwreg(HW_REG_HW_ID)")
    A("  v_mov_b32 v4, s24"); A("  v_mov_b32 v5, s26"); A("  v_mov_b32 v6, s28"); A("  v_mov_b32 v7, s29")
    A("  s_lshl_b32 s18, s2, 4"); A(f"  s_add_u32 s18, s18, {1<<29}")
    A("  v_mov_b32 v1, 0")
    A("  s_mov_b64 exec, 1")
    A("  buffer_store_dwordx4 v[4:7], v1, s[20:23], s18 offen")
    A("  s_waitcnt vmcnt(0)")
    A("L_end:")
    A("  s_endpgm")
    nv = VB + (R * U * 4 if mode == 'vgpr' else 0)
    nv = max(nv, 8)
    assert nv <= 512
    acc = min(256, (nv + 3) // 4 * 4)
    assert nv <= 256
    A('.section .rodata,"a"'); A(".p2align 6"); A(f".amdhsa_kernel {KN}")
    A(f"  .amdhsa_next_free_vgpr {nv}"); A("  .amdhsa_next_free_sgpr 40"); A(f"  .amdhsa_accum_offset {acc}")
    A("  .amdhsa_group_segment_fixed_size 0"); A("  .amdhsa_kernarg_size 48"); A("  .amdhsa_user_sgpr_count 2")
    A("  .amdhsa_user_sgpr_kernarg_segment_ptr 1"); A("  .amdhsa_system_sgpr_workgroup_id_x 1"); A(".end_amdhsa_kernel")
    return "\n".join(L) + "\n"

if __name__ == "__main__":
    import itertools
    cfgs = eval(sys.argv[1])
    names = []
    for c in cfgs:
        name = "bw_" + "_".join(f"{k}{str(v).replace(' ','')}" for k, v in c.items()) + ".s"
        open(name, "w").write(gen(**c))
        names.append(name)
    print(" ".join(names)); print(",".join("\"work/%s\"" % n for n in names))
```
